```python
import torch

def _softmax(x, axis=-1):
    return torch.softmax(x, dim=axis)
def _gelu(x):
    return torch.nn.functional.gelu(x, approximate="tanh")
def _silu(x):
    return torch.nn.functional.silu(x)
def _sigmoid(x):
    return torch.sigmoid(x)
def _layernorm(x, axis=-1, eps=1e-5):
    m = x.mean(dim=axis, keepdim=True)
    v = x.var(dim=axis, keepdim=True, unbiased=False)
    return (x - m) / torch.sqrt(v + eps)
def _scatter_add(tgt, idx, src, axis=0):
    return tgt.clone().index_add_(axis, idx, src)
def _segment_sum(src, seg, n):
    out = torch.zeros((n,) + src.shape[1:], dtype=src.dtype)
    return out.index_add_(0, seg, src)
def _pad(x, pw):
    flat = tuple(v for pair in reversed(pw) for v in pair)
    return torch.nn.functional.pad(x, flat)

kernel_name = 'concat_heads__mha_block__spectral_fnet__prompt'

def setup_inputs():

    _w = (lambda a: (lambda t: t.to(torch.bfloat16) if t.is_floating_point() else t)(torch.as_tensor(a)))
    def _A_setup():
        B, S, D, H = 1, 2048, 1024, 32
        return {
            "x": _w((lambda *s: torch.randn(*s, dtype=torch.bfloat16) * 0.2)(B, S, D)),
            "wqkv": _w((lambda *s: torch.randn(*s, dtype=torch.bfloat16) * 0.8)(D, 3 * D)),
            "wo": _w((lambda *s: torch.randn(*s, dtype=torch.bfloat16) * 0.2)(D, D)),
        }
    _A_in = _A_setup()

    def _B_setup():
        B, S, D = 1, 2048, 1024
        ns = torch.arange(S)[:, None] * torch.arange(S)[None, :]
        nd = torch.arange(D)[:, None] * torch.arange(D)[None, :]
        Ws_re = torch.cos(-2.0 * torch.pi * ns / S).to(float)
        Ws_im = torch.sin(-2.0 * torch.pi * ns / S).to(float)
        Wd_re = torch.cos(-2.0 * torch.pi * nd / D).to(float)
        Wd_im = torch.sin(-2.0 * torch.pi * nd / D).to(float)
        return {
            "x": _w((lambda *s: torch.randn(*s, dtype=torch.bfloat16) * 0.05)(B, S, D)),
            "dft_seq_re": _w(Ws_re),
            "dft_seq_im": _w(Ws_im),
            "dft_hid_re": _w(Wd_re),
            "dft_hid_im": _w(Wd_im),
        }
    _B_in = _B_setup()

    return {
        "A_x": _A_in["x"],
        "A_wqkv": _A_in["wqkv"],
        "A_wo": _A_in["wo"],
        "B_x": _B_in["x"],
        "B_dft_seq_re": _B_in["dft_seq_re"],
        "B_dft_seq_im": _B_in["dft_seq_im"],
        "B_dft_hid_re": _B_in["dft_hid_re"],
        "B_dft_hid_im": _B_in["dft_hid_im"],
    }

def reference(A_x, A_wqkv, A_wo, B_x, B_dft_seq_re, B_dft_seq_im, B_dft_hid_re, B_dft_hid_im):
    def _A_ref(x, wqkv, wo):
        B, S, D = x.shape
        H = 32
        Dh = D // H
        qkv = (lambda x, *d: x.permute(*d))((x @ wqkv).reshape(B, S, 3, H, Dh), 2, 0, 3, 1, 4)
        q, k, v = qkv[0], qkv[1], qkv[2]
        scores = torch.einsum("bhqd,bhkd->bhqk", q, k) * (Dh ** -0.5)
        p = _softmax(scores, axis=-1)
        o = torch.einsum("bhqk,bhkd->bhqd", p, v)
        return (lambda x, *d: x.permute(*d))(o, 0, 2, 1, 3).reshape(B, S, D) @ wo

    def _B_ref(x, dft_seq_re, dft_seq_im, dft_hid_re, dft_hid_im):
        a = torch.einsum("bsd,ed->bse", x, dft_hid_re)
        b = torch.einsum("bsd,ed->bse", x, dft_hid_im)
        y = torch.einsum("ts,bse->bte", dft_seq_re, a) - torch.einsum("ts,bse->bte", dft_seq_im, b)
        return y

    a = _A_ref(A_x, A_wqkv, A_wo)
    b = _B_ref(B_x, B_dft_seq_re, B_dft_seq_im, B_dft_hid_re, B_dft_hid_im)
    return torch.concatenate([a, b], axis=-1)
```

```python
class Asm:
    def __init__(self):
        self.lines = []
        self.uid = 0
    def __call__(self, s):
        for ln in s.split("\n"):
            self.lines.append("  " + ln.strip() if ln.strip() and not ln.strip().endswith(":") else ln.strip())
    def label(self, name):
        self.lines.append(name + ":")
    def newlabel(self, base):
        self.uid += 1
        return f"{base}_{self.uid}"
    def c(self, s):
        self.lines.append("  ; " + s)
    def raw(self, s):
        self.lines.append(s)
    def text(self):
        return "\n".join(self.lines) + "\n"

def v(i): return f"v{i}"
def vr(i, n): return f"v[{i}:{i+n-1}]"
def s(i): return f"s{i}"
def sr(i, n): return f"s[{i}:{i+n-1}]"

def kernel_header(a, name):
    a.raw(f".globl {name}")
    a.raw(".p2align 8")
    a.raw(f".type {name},@function")
    a.raw(f"{name}:")

def kernel_desc(name, vgpr, sgpr=102, accum=None):
    if accum is None:
        accum = (vgpr + 3) // 4 * 4
    return f""".amdhsa_kernel {name}
  .amdhsa_next_free_vgpr {vgpr}
  .amdhsa_next_free_sgpr {sgpr}
  .amdhsa_accum_offset {accum}
  .amdhsa_group_segment_fixed_size 0
  .amdhsa_kernarg_size 88
  .amdhsa_user_sgpr_count 2
  .amdhsa_user_sgpr_kernarg_segment_ptr 1
  .amdhsa_system_sgpr_workgroup_id_x 1
.end_amdhsa_kernel
"""

def srd(a, d, base, size):
    a(f"s_mov_b32 s{d}, s{base}")
    a(f"s_mov_b32 s{d+1}, s{base+1}")
    a(f"s_mov_b32 s{d+2}, {hex(size)}")
    a(f"s_mov_b32 s{d+3}, 0x00020000")

def srd_off(a, d, base, off, size):
    a(f"s_add_u32 s{d}, s{base}, {hex(off)}")
    a(f"s_addc_u32 s{d+1}, s{base+1}, 0")
    a(f"s_mov_b32 s{d+2}, {hex(size)}")
    a(f"s_mov_b32 s{d+3}, 0x00020000")
```

```python
from asmlib import *
from gen_qkv import WS_QF, WS_KV, WS_OF, WS_A_SIZE, f32hex

OFFSET = 80.0

def gen_attn(a, name="attn_kernel", prof=False, order=0):
    kernel_header(a, name)
    L = lambda x: f"{name}_{x}"
    Q = 8; CM = 16; S = [32, 48]; O = 64; P = 80; LS = 88; ONES = 92; K = [96, 104]; V = [112, 120]
    VA = 2; VB = 3; VD = 4; VL16 = 5; T0 = 6; T1 = 7
    FLAG = 65536
    a("s_cmp_ge_u32 s2, 256")
    a(f"s_cbranch_scc1 {L('done')}")
    if prof:
        a("s_memrealtime s[60:61]")
        a("s_memtime s[62:63]")
    a("s_load_dwordx2 s[8:9], s[0:1], 80")
    a("s_and_b32 s20, s2, 7")
    a("s_lshl_b32 s20, s20, 2")
    a("s_bfe_u32 s21, s2, 0x20003")
    a("s_add_u32 s20, s20, s21")
    a("s_lshr_b32 s21, s2, 5")
    a("v_lshrrev_b32 v1, 6, v0")
    a("v_and_b32 v0, 63, v0")
    a("v_readfirstlane_b32 s22, v1")
    a(f"v_lshlrev_b32 v{VL16}, 4, v0")
    a("s_lshl_b32 s23, s21, 3")
    a("s_add_u32 s23, s23, s22")
    a("s_lshl_b32 s24, s20, 6")
    a("s_add_u32 s24, s24, s23")
    a("s_lshl_b32 s24, s24, 11")
    a("s_lshl_b32 s25, s20, 18")
    a(f"s_add_u32 s25, s25, {hex(WS_KV)}")
    a("s_lshl_b32 s26, s22, 11")
    a(f"v_add_u32 v{VD}, s26, v{VL16}")
    a(f"v_and_b32 v{T0}, 7, v0")
    a(f"v_bfe_u32 v{T1}, v0, 4, 1")
    a(f"v_lshlrev_b32 v{T1}, 2, v{T1}")
    a(f"v_cmp_eq_u32 vcc, v{T0}, v{T1}")
    a(f"v_mov_b32 v{T0}, 0x3f803f80")
    a("s_nop 1")
    for r in range(4):
        a(f"v_cndmask_b32 v{ONES+r}, 0, v{T0}, vcc")
    a(f"v_mov_b32 v{T0}, 0")
    a(f"v_mov_b32 v{T1}, {FLAG}")
    a(f"ds_write_b32 v{T1}, v{T0}")
    a("s_waitcnt lgkmcnt(0)")
    srd(a, 12, 8, WS_A_SIZE)
    a(f"buffer_load_dwordx4 {vr(Q,4)}, v{VL16}, s[12:15], s24 offen")
    a(f"buffer_load_dwordx4 {vr(Q+4,4)}, v{VL16}, s[12:15], s24 offen offset:1024")
    a("s_mov_b32 s27, 0")

    def dma(chunk_sgpr_off, m0expr):
        a(m0expr)
        a("s_nop 0")
        a(f"buffer_load_dwordx4 v{VD}, s[12:15], {chunk_sgpr_off} offen lds")
        a(f"buffer_load_dwordx4 v{VD}, s[12:15], {chunk_sgpr_off} offen offset:1024 lds")

    a.label(L("start"))
    for c in range(3):
        a(f"s_add_u32 s28, s25, {c*16384}")
        dma("s28", f"s_add_u32 m0, s26, {c*16384}")
    a("s_waitcnt vmcnt(4)")
    a("s_barrier")
    if prof:
        a("s_memtime s[64:65]")
    a(f"ds_read_b128 {vr(K[0],4)}, v{VL16}")
    a(f"ds_read_b128 {vr(K[0]+4,4)}, v{VL16} offset:1024")
    a(f"ds_read_b128 {vr(K[1],4)}, v{VL16} offset:4096")
    a(f"ds_read_b128 {vr(K[1]+4,4)}, v{VL16} offset:5120")
    a(f"ds_read_b128 {vr(V[0],4)}, v{VL16} offset:2048")
    a(f"ds_read_b128 {vr(V[0]+4,4)}, v{VL16} offset:3072")
    a("s_waitcnt lgkmcnt(0)")
    a("s_cmp_lg_u32 s27, 0")
    a(f"s_cbranch_scc1 {L('havem')}")
    for t in range(2):
        a(f"v_mfma_f32_32x32x16_bf16 {vr(S[t],16)}, {vr(K[t],4)}, {vr(Q,4)}, 0")
        a(f"v_mfma_f32_32x32x16_bf16 {vr(S[t],16)}, {vr(K[t]+4,4)}, {vr(Q+4,4)}, {vr(S[t],16)}")
    a("s_nop 15")
    a(f"v_max3_f32 v{T0}, v{S[0]}, v{S[0]+1}, v{S[0]+2}")
    for r in range(3, 31, 2):
        a(f"v_max3_f32 v{T0}, v{T0}, v{S[0]+r}, v{S[0]+r+1}")
    a(f"v_max_f32 v{T0}, v{T0}, v{S[0]+31}")
    a(f"v_mov_b32 v{T1}, v{T0}")
    a("s_nop 1")
    a(f"v_permlane32_swap_b32 v{T0}, v{T1}")
    a("s_nop 1")
    a(f"v_max_f32 v{T0}, v{T0}, v{T1}")
    a(f"v_add_f32 v{T0}, {f32hex(OFFSET)}, v{T0}")
    for r in range(16):
        a(f"v_sub_f32 v{CM+r}, 0, v{T0}")
    a.label(L("havem"))
    for r in range(16): a(f"v_mov_b32 v{O+r}, 0")
    for r in range(4): a(f"v_mov_b32 v{LS+r}, 0")
    for r in range(4, 8): a(f"v_mov_b32 v{P+r}, 0")
    for r in range(4, 8): a(f"v_mov_b32 v{V[1]+r}, 0")
    a("s_nop 1")
    a(f"v_mfma_f32_32x32x16_bf16 {vr(S[0],16)}, {vr(K[0],4)}, {vr(Q,4)}, {vr(CM,16)}")
    a(f"v_mfma_f32_32x32x16_bf16 {vr(S[0],16)}, {vr(K[0]+4,4)}, {vr(Q+4,4)}, {vr(S[0],16)}")
    a(f"v_mov_b32 v{VA}, v{VL16}")
    a(f"v_add_u32 v{VB}, 16384, v{VL16}")
    a("s_mov_b32 s30, 0")
    a("s_mov_b32 s31, 16384")
    a("s_nop 7")

    a.label(L("loop"))
    for j in range(4):
        cur = j & 1; nxt = 1 - cur
        Sc, Sn = S[cur], S[nxt]
        if j < 2: kaddr, koff = VA, (j + 2) * 4096
        else:     kaddr, koff = VB, (j - 2) * 4096
        if j < 3: vaddr, voff = VA, (j + 1) * 4096 + 2048
        else:     vaddr, voff = VB, 2048
        rK = [f"ds_read_b128 {vr(K[cur],4)}, v{kaddr} offset:{koff}",
              f"ds_read_b128 {vr(K[cur]+4,4)}, v{kaddr} offset:{koff+1024}"]
        rV = [f"ds_read_b128 {vr(V[nxt],4)}, v{vaddr} offset:{voff}",
              f"ds_read_b128 {vr(V[nxt]+4,4)}, v{vaddr} offset:{voff+1024}"]
        ex = [f"v_exp_f32 v{Sc+r}, v{Sc+r}" for r in range(16)]
        cv = [f"v_cvt_pk_bf16_f32 v{P+r}, v{Sc+2*r}, v{Sc+2*r+1}" for r in range(8)]
        QK0 = f"v_mfma_f32_32x32x16_bf16 {vr(Sn,16)}, {vr(K[nxt],4)}, {vr(Q,4)}, {vr(CM,16)}"
        QK1 = f"v_mfma_f32_32x32x16_bf16 {vr(Sn,16)}, {vr(K[nxt]+4,4)}, {vr(Q+4,4)}, {vr(Sn,16)}"
        PV0 = f"v_mfma_f32_32x32x16_bf16 {vr(O,16)}, {vr(V[cur],4)}, {vr(P,4)}, {vr(O,16)}"
        RS0 = f"v_mfma_f32_16x16x32_bf16 {vr(LS,4)}, {vr(ONES,4)}, {vr(P,4)}, {vr(LS,4)}"
        PV1p = f"v_mfma_f32_32x32x16_bf16 {vr(O,16)}, {vr(V[nxt]+4,4)}, {vr(P+4,4)}, {vr(O,16)}"
        RS1p = f"v_mfma_f32_16x16x32_bf16 {vr(LS,4)}, {vr(ONES,4)}, {vr(P+4,4)}, {vr(LS,4)}"
        a("s_waitcnt lgkmcnt(0)")
        if j == 2:
            a("s_waitcnt vmcnt(2)")
            a("s_barrier")
            a("s_add_u32 s28, s30, 3")
            a("s_and_b32 s29, s28, 3")
            a("s_min_u32 s28, s28, 15")
            a("s_lshl_b32 s28, s28, 14")
            a("s_add_u32 s28, s28, s25")
            a("s_lshl_b32 s29, s29, 14")
            dma("s28", "s_add_u32 m0, s29, s26")
        if order == 0:
            seq = [ex[0], ex[1], PV1p, ex[2], RS1p, QK0, rV[0], ex[3], ex[4], ex[5], QK1, rV[1], ex[6], ex[7],
                   cv[0], cv[1], cv[2], cv[3], rK[0], ex[8], ex[9], PV0, rK[1], ex[10], ex[11], ex[12], RS0, ex[13], ex[14], ex[15],
                   "s_nop 0", cv[4], cv[5], cv[6], cv[7]]
        for ins in seq: a(ins)
    a(f"v_mov_b32 v{VA}, v{VB}")
    a("s_add_u32 s31, s31, 16384")
    a("s_and_b32 s31, s31, 0xffff")
    a(f"v_add_u32 v{VB}, s31, v{VL16}")
    a("s_add_u32 s30, s30, 1")
    a("s_cmp_lt_u32 s30, 16")
    a(f"s_cbranch_scc1 {L('loop')}")
    a("s_nop 1")
    a(f"v_mfma_f32_32x32x16_bf16 {vr(O,16)}, {vr(V[1]+4,4)}, {vr(P+4,4)}, {vr(O,16)}")
    a(f"v_mfma_f32_16x16x32_bf16 {vr(LS,4)}, {vr(ONES,4)}, {vr(P+4,4)}, {vr(LS,4)}")
    if prof:
        a("s_memtime s[66:67]")
    a("s_nop 15")
    a("s_nop 3")
    a(f"v_add_f32 v{T0}, |v{O}|, |v{O+1}|")
    for r in range(2, 16):
        a(f"v_add_f32 v{T0}, v{T0}, |v{O+r}|")
    a(f"s_mov_b32 s28, {f32hex(2.0**126)}")
    a(f"s_mov_b32 s29, {f32hex(2.0**-100)}")
    a(f"v_cmp_nlt_f32 s[32:33], v{T0}, s28")
    a(f"v_cmp_lt_f32 s[34:35], v{T0}, s29")
    a(f"v_cmp_nlt_f32 s[36:37], v{LS}, s28")
    a("s_nop 3")
    a("s_or_b64 s[32:33], s[32:33], s[34:35]")
    a("s_or_b64 s[32:33], s[32:33], s[36:37]")
    a("s_cmp_lg_u64 s[32:33], 0")
    a("s_cselect_b32 s28, 1, 0")
    a(f"v_mov_b32 v{T0}, s28")
    a(f"v_mov_b32 v{T1}, {FLAG}")
    a(f"ds_or_b32 v{T1}, v{T0}")
    a("s_waitcnt vmcnt(0) lgkmcnt(0)")
    a("s_barrier")
    a(f"ds_read_b32 v{T0}, v{T1}")
    a("s_waitcnt lgkmcnt(0)")
    a(f"v_readfirstlane_b32 s28, v{T0}")
    a("s_cmp_eq_u32 s28, 0")
    a(f"s_cbranch_scc1 {L('fin')}")
    a("s_cmp_lg_u32 s27, 0")
    a(f"s_cbranch_scc1 {L('fin')}")
    a("s_mov_b32 s27, 1")
    a(f"v_mov_b32 v{T0}, 0xff800000")
    a("s_mov_b32 s30, 0")
    a.label(L("mx"))
    a("s_barrier")
    a("s_lshl_b32 s28, s30, 14")
    a("s_add_u32 s28, s28, s25")
    dma("s28", "s_mov_b32 m0, s26")
    a("s_waitcnt vmcnt(0)")
    a("s_barrier")
    for t in range(4):
        a(f"ds_read_b128 {vr(K[0],4)}, v{VL16} offset:{t*4096}")
        a(f"ds_read_b128 {vr(K[0]+4,4)}, v{VL16} offset:{t*4096+1024}")
        a("s_waitcnt lgkmcnt(0)")
        a(f"v_mfma_f32_32x32x16_bf16 {vr(S[0],16)}, {vr(K[0],4)}, {vr(Q,4)}, 0")
        a(f"v_mfma_f32_32x32x16_bf16 {vr(S[0],16)}, {vr(K[0]+4,4)}, {vr(Q+4,4)}, {vr(S[0],16)}")
        a("s_nop 15")
        for r in range(0, 16, 2):
            a(f"v_max3_f32 v{T0}, v{T0}, v{S[0]+r}, v{S[0]+r+1}")
    a("s_add_u32 s30, s30, 1")
    a("s_cmp_lt_u32 s30, 16")
    a(f"s_cbranch_scc1 {L('mx')}")
    a(f"v_mov_b32 v{T1}, v{T0}")
    a("s_nop 1")
    a(f"v_permlane32_swap_b32 v{T0}, v{T1}")
    a("s_nop 1")
    a(f"v_max_f32 v{T0}, v{T0}, v{T1}")
    for r in range(16):
        a(f"v_sub_f32 v{CM+r}, 0, v{T0}")
    a("s_barrier")
    a(f"s_branch {L('start')}")
    a.label(L("fin"))
    a(f"v_rcp_f32 v{T0}, v{LS}")
    a("s_nop 0")
    for r in range(16):
        a(f"v_mul_f32 v{O+r}, v{O+r}, v{T0}")
    for r in range(8):
        a(f"v_cvt_pk_bf16_f32 v{P+r}, v{O+2*r}, v{O+2*r+1}")
    a("s_lshl_b32 s28, s23, 6")
    a("s_lshl_b32 s29, s20, 1")
    a("s_add_u32 s28, s28, s29")
    a("s_lshl_b32 s28, s28, 10")
    a(f"s_add_u32 s28, s28, {hex(WS_OF)}")
    a(f"buffer_store_dwordx4 {vr(P,4)}, v{VL16}, s[12:15], s28 offen")
    a(f"buffer_store_dwordx4 {vr(P+4,4)}, v{VL16}, s[12:15], s28 offen offset:1024")
    a("s_waitcnt vmcnt(0)")
    if prof:
        a("s_memtime s[68:69]")
        a("s_memrealtime s[70:71]")
        a("s_waitcnt lgkmcnt(0)")
        srd_off(a, 12, 8, 201 << 20, 1 << 20)
        a("s_sub_u32 s64, s64, s62")
        a("s_sub_u32 s66, s66, s62")
        a("s_sub_u32 s68, s68, s62")
        a("v_mov_b32 v16, s60")
        a("v_mov_b32 v17, s70")
        a("v_mov_b32 v18, s64")
        a("v_mov_b32 v19, s66")
        a("v_mov_b32 v20, s68")
        a("v_mov_b32 v21, s27")
        a("v_mov_b32 v22, 0")
        a("v_mov_b32 v23, 0")
        a("s_lshl_b32 s28, s2, 3")
        a("s_add_u32 s28, s28, s22")
        a("s_lshl_b32 s28, s28, 5")
        a("v_mov_b32 v8, s28")
        a("v_cmp_eq_u32 vcc, 0, v0")
        a("s_and_saveexec_b64 s[30:31], vcc")
        a("buffer_store_dwordx4 v[16:19], v8, s[12:15], 0 offen")
        a("buffer_store_dwordx4 v[20:23], v8, s[12:15], 0 offen offset:16")
        a("s_waitcnt vmcnt(0)")
    a.label(L("done"))
    a("s_endpgm")
    return kernel_desc(name, 128, 80)
```

```python
from asmlib import *
from gen_qkv import f32hex

WS_Z = 16 << 20
WS_Z_SIZE = 8 << 20

def prof_tail(a, wsbase, off_mb, wave_sgpr, idsgpr="s2"):
    a("s_memtime s[68:69]")
    a("s_memrealtime s[70:71]")
    a("s_waitcnt lgkmcnt(0)")
    srd_off(a, 12, wsbase, off_mb << 20, 1 << 20)
    a("s_sub_u32 s64, s64, s62")
    a("s_sub_u32 s66, s66, s62")
    a("s_sub_u32 s68, s68, s62")
    a("v_mov_b32 v16, s60")
    a("v_mov_b32 v17, s70")
    a("v_mov_b32 v18, s64")
    a("v_mov_b32 v19, s66")
    a("v_mov_b32 v20, s68")
    a("v_mov_b32 v21, 0")
    a("v_mov_b32 v22, 0")
    a("v_mov_b32 v23, 0")
    a(f"s_lshl_b32 s28, {idsgpr}, 3")
    a(f"s_add_u32 s28, s28, {wave_sgpr}")
    a("s_lshl_b32 s28, s28, 5")
    a("v_mov_b32 v8, s28")
    a("v_cmp_eq_u32 vcc, 0, v0")
    a("s_and_saveexec_b64 s[30:31], vcc")
    a("buffer_store_dwordx4 v[16:19], v8, s[12:15], 0 offen")
    a("buffer_store_dwordx4 v[20:23], v8, s[12:15], 0 offen offset:16")
    a("s_waitcnt vmcnt(0)")
    a("s_mov_b64 exec, s[30:31]")

def b_pass1(a, jid, sx, sws, zflags="", prof=False):
    T0, T1, T2, T3 = 1, 2, 3, 4
    VD0, VD1 = 5, 6
    RA = 7
    WU = 8
    RU = 9
    RU1 = 10
    VZ = 11
    FB = 12
    XF = 16
    DA = 48
    GRE, GIM, NGIM, NGRE = 80, 88, 96, 104
    UF = 16
    DRE, DIM = 32, 48
    TRE, TIM = 64, 72
    ZRE, ZIM = 32, 48
    E1F = 112
    a(f"s_and_b32 s20, {jid}, 7")
    a(f"s_lshr_b32 s21, {jid}, 5")
    a("s_lshl_b32 s21, s21, 3")
    a("s_add_u32 s20, s20, s21")
    a(f"s_bfe_u32 s21, {jid}, 0x20003")
    srd(a, 12, sx, 2048 * 1024 * 2)
    srd_off(a, 16, sws, WS_Z, WS_Z_SIZE)
    a(f"v_lshrrev_b32 v{T0}, 4, v0")
    a(f"v_lshlrev_b32 v{T1}, 17, v{T0}")
    a("s_lshl_b32 s22, s20, 11")
    a("s_lshl_b32 s23, s25, 8")
    a("s_add_u32 s22, s22, s23")
    a(f"v_add_u32 v{T1}, s22, v{T1}")
    a(f"v_and_b32 v{T2}, 15, v0")
    a(f"v_lshlrev_b32 v{T0}, 1, v{T0}")
    a(f"v_xor_b32 v{T2}, v{T2}, v{T0}")
    a(f"v_xor_b32 v{T3}, 8, v{T2}")
    a(f"v_lshlrev_b32 v{T2}, 4, v{T2}")
    a(f"v_lshlrev_b32 v{T3}, 4, v{T3}")
    a(f"v_add_u32 v{VD0}, v{T1}, v{T2}")
    a(f"v_add_u32 v{VD1}, v{T1}, v{T3}")
    a("s_lshl_b32 s24, s25, 13")
    a("s_mov_b32 s26, 0")
    for i in range(8):
        a(f"s_add_u32 m0, s24, {i*1024}")
        a("s_nop 0")
        a(f"buffer_load_dwordx4 v{[VD0, VD1][i & 1]}, s[12:15], s26 offen lds")
        a(f"s_add_u32 s26, s26, {4 * 64 * 2048}")
    a(f"v_bfe_u32 v{T0}, v0, 1, 3")
    a("s_lshl_b32 s27, s21, 3")
    a(f"v_add_u32 v{T0}, s27, v{T0}")
    a(f"v_cvt_f32_u32 v{T0}, v{T0}")
    a(f"v_mul_f32 v{T0}, {f32hex(-1.0/32)}, v{T0}")
    a(f"v_lshrrev_b32 v{T1}, 4, v0")
    a(f"v_lshlrev_b32 v{T1}, 2, v{T1}")
    a(f"v_cvt_f32_u32 v{T1}, v{T1}")
    a(f"v_and_b32 v{T2}, 1, v0")
    a(f"v_cvt_f32_u32 v{T2}, v{T2}")
    a(f"v_mul_f32 v{T2}, -0.5, v{T2}")
    a(f"v_mul_f32 v{T2}, 0.5, v{T2}")
    for i in range(8):
        off = 16 * (i >> 2) + (i & 3)
        a(f"v_add_f32 v{DA+i}, {f32hex(float(off))}, v{T1}")
        a(f"v_mul_f32 v{DA+i}, v{DA+i}, v{T0}")
        a(f"v_fract_f32 v{DA+i}, v{DA+i}")
        a(f"v_add_f32 v{DA+i}, v{DA+i}, v{T2}")
        a(f"v_cos_f32 v{DA+i}, v{DA+i}")
    a("s_nop 0")
    for i in range(4):
        a(f"v_cvt_pk_bf16_f32 v{FB+i}, v{DA+2*i}, v{DA+2*i+1}")
    a(f"v_and_b32 v{T0}, 31, v0")
    a(f"v_cvt_f32_u32 v{T0}, v{T0}")
    a(f"v_mul_f32 v{E1F}, {f32hex(-1.0/1024)}, v{T0}")
    a(f"v_mul_f32 v{T0}, {f32hex(-1.0/32)}, v{T0}")
    a(f"v_lshrrev_b32 v{T1}, 5, v0")
    a(f"v_lshlrev_b32 v{T1}, 2, v{T1}")
    a(f"v_cvt_f32_u32 v{T1}, v{T1}")
    for kap in range(2):
        for i in range(8):
            off = 16 * kap + 8 * (i >> 2) + (i & 3)
            a(f"v_add_f32 v{DA+i}, {f32hex(float(off))}, v{T1}")
            a(f"v_mul_f32 v{DA+i}, v{DA+i}, v{T0}")
            a(f"v_fract_f32 v{DA+i}, v{DA+i}")
            a(f"v_sin_f32 v{DA+8+i}, v{DA+i}")
            a(f"v_cos_f32 v{DA+i}, v{DA+i}")
        a("s_nop 0")
        for i in range(4):
            a(f"v_cvt_pk_bf16_f32 v{GRE+4*kap+i}, v{DA+2*i}, v{DA+2*i+1}")
            a(f"v_cvt_pk_bf16_f32 v{GIM+4*kap+i}, v{DA+8+2*i}, v{DA+8+2*i+1}")
    a("s_mov_b32 s27, 0x80008000")
    for r in range(8):
        a(f"v_xor_b32 v{NGIM+r}, s27, v{GIM+r}")
        a(f"v_xor_b32 v{NGRE+r}, s27, v{GRE+r}")
    a(f"v_lshrrev_b32 v{T0}, 4, v0")
    a(f"v_lshlrev_b32 v{T0}, 2, v{T0}")
    a(f"v_bfe_u32 v{T1}, v0, 2, 2")
    a(f"v_add_u32 v{T0}, v{T0}, v{T1}")
    a(f"v_and_b32 v{T1}, 7, v{T0}")
    a(f"v_lshlrev_b32 v{T1}, 1, v{T1}")
    a(f"v_bfe_u32 v{T2}, v0, 1, 1")
    a(f"v_xor_b32 v{T1}, v{T1}, v{T2}")
    a(f"v_lshlrev_b32 v{T1}, 4, v{T1}")
    a(f"v_lshlrev_b32 v{T0}, 8, v{T0}")
    a(f"v_add_u32 v{T0}, v{T0}, v{T1}")
    a(f"v_and_b32 v{T1}, 1, v0")
    a(f"v_lshlrev_b32 v{T1}, 3, v{T1}")
    a(f"v_add_u32 v{T0}, v{T0}, v{T1}")
    a(f"v_add_u32 v{RA}, s24, v{T0}")
    a(f"v_and_b32 v{T0}, 15, v0")
    a(f"v_lshlrev_b32 v{T1}, 1, v{T0}")
    a(f"v_lshrrev_b32 v{T2}, 4, v0")
    a(f"v_xor_b32 v{T1}, v{T1}, v{T2}")
    a(f"v_lshlrev_b32 v{T1}, 3, v{T1}")
    a(f"v_lshlrev_b32 v{T0}, 8, v{T0}")
    a(f"v_add_u32 v{T0}, v{T0}, v{T1}")
    a(f"v_add_u32 v{WU}, s24, v{T0}")
    a(f"v_lshrrev_b32 v{T0}, 5, v0")
    a(f"v_lshlrev_b32 v{T0}, 13, v{T0}")
    a(f"v_bfe_u32 v{T1}, v0, 2, 2")
    a(f"v_lshlrev_b32 v{T1}, 3, v{T1}")
    a(f"v_bfe_u32 v{T2}, v0, 4, 1")
    a(f"v_lshlrev_b32 v{T2}, 2, v{T2}")
    a(f"v_add_u32 v{T1}, v{T1}, v{T2}")
    a(f"v_and_b32 v{T2}, 3, v0")
    a(f"v_add_u32 v{T1}, v{T1}, v{T2}")
    a("s_lshl_b32 s27, s25, 2")
    a(f"v_xor_b32 v{T2}, s27, v{T1}")
    a(f"v_lshlrev_b32 v{T2}, 3, v{T2}")
    a(f"v_add_u32 v{T2}, v{T0}, v{T2}")
    a("s_lshl_b32 s28, s25, 9")
    a(f"v_add_u32 v{RU}, s28, v{T2}")
    a("s_add_u32 s27, s27, 2")
    a(f"v_xor_b32 v{T2}, s27, v{T1}")
    a(f"v_lshlrev_b32 v{T2}, 3, v{T2}")
    a(f"v_add_u32 v{T2}, v{T0}, v{T2}")
    a("s_add_u32 s28, s28, 256")
    a(f"v_add_u32 v{RU1}, s28, v{T2}")
    a("s_lshl_b32 s27, s21, 3")
    a("s_add_u32 s27, s27, s25")
    a("s_lshl_b32 s27, s27, 18")
    a("s_lshl_b32 s28, s20, 11")
    a("s_add_u32 s27, s27, s28")
    a(f"v_and_b32 v{T0}, 31, v0")
    a(f"v_lshlrev_b32 v{T0}, 5, v{T0}")
    a(f"v_lshrrev_b32 v{T1}, 5, v0")
    a(f"v_lshlrev_b32 v{T1}, 4, v{T1}")
    a(f"v_add_u32 v{T0}, v{T0}, v{T1}")
    a(f"v_add_u32 v{VZ}, s27, v{T0}")
    a("s_waitcnt vmcnt(0)")
    if prof: a("s_memtime s[64:65]")
    for tile in range(8):
        a(f"v_xor_b32 v{T0}, {2*tile*16}, v{RA}")
        a(f"ds_read_b64_tr_b16 {vr(XF+4*tile,2)}, v{T0}")
        a(f"ds_read_b64_tr_b16 {vr(XF+4*tile+2,2)}, v{T0} offset:4096")
    a("s_waitcnt lgkmcnt(0)")
    for tile in range(8):
        a(f"v_mfma_f32_16x16x32_bf16 {vr(DA+4*tile,4)}, {vr(XF+4*tile,4)}, {vr(FB,4)}, 0")
    a("s_nop 7")
    for tile in range(8):
        a(f"v_cvt_pk_bf16_f32 v{XF+2*tile}, v{DA+4*tile}, v{DA+4*tile+1}")
        a(f"v_cvt_pk_bf16_f32 v{XF+2*tile+1}, v{DA+4*tile+2}, v{DA+4*tile+3}")
        a(f"v_xor_b32 v{T0}, {4*tile*8}, v{WU}")
        a(f"ds_write_b64 v{T0}, {vr(XF+2*tile,2)}")
    a("s_waitcnt lgkmcnt(0)")
    a("s_barrier")
    for c in range(2):
        for kap in range(2):
            for t in range(2):
                a(f"ds_read_b64_tr_b16 {vr(UF + 8*c + 4*kap + 2*t, 2)}, v{[RU, RU1][c]} offset:{(4*kap + 2*t)*8192}")
    a("s_waitcnt lgkmcnt(0)")
    ure = lambda k: vr(UF + 4*k, 4); uim = lambda k: vr(UF + 8 + 4*k, 4)
    g = lambda base, k: vr(base + 4*k, 4)
    a(f"v_mfma_f32_32x32x16_bf16 {vr(DRE,16)}, {ure(0)}, {g(GRE,0)}, 0")
    a(f"v_mfma_f32_32x32x16_bf16 {vr(DIM,16)}, {ure(0)}, {g(GIM,0)}, 0")
    a(f"v_mfma_f32_32x32x16_bf16 {vr(DRE,16)}, {ure(1)}, {g(GRE,1)}, {vr(DRE,16)}")
    a(f"v_mfma_f32_32x32x16_bf16 {vr(DIM,16)}, {ure(1)}, {g(GIM,1)}, {vr(DIM,16)}")
    a(f"v_mfma_f32_32x32x16_bf16 {vr(DRE,16)}, {uim(0)}, {g(NGIM,0)}, {vr(DRE,16)}")
    a(f"v_mfma_f32_32x32x16_bf16 {vr(DIM,16)}, {uim(0)}, {g(GRE,0)}, {vr(DIM,16)}")
    a(f"v_mfma_f32_32x32x16_bf16 {vr(DRE,16)}, {uim(1)}, {g(NGIM,1)}, {vr(DRE,16)}")
    a(f"v_mfma_f32_32x32x16_bf16 {vr(DIM,16)}, {uim(1)}, {g(GRE,1)}, {vr(DIM,16)}")
    a(f"v_lshrrev_b32 v{T1}, 5, v0")
    a(f"v_lshlrev_b32 v{T1}, 2, v{T1}")
    a(f"v_cvt_f32_u32 v{T1}, v{T1}")
    TC, TS = 64, 16
    for r in range(16):
        off = 8 * (r >> 2) + (r & 3)
        a(f"v_add_f32 v{TC+r}, {f32hex(float(off))}, v{T1}")
        a(f"v_mul_f32 v{TC+r}, v{TC+r}, v{E1F}")
    a("s_nop 7")
    for r in range(16):
        a(f"v_sin_f32 v{TS+r}, v{TC+r}")
        a(f"v_cos_f32 v{TC+r}, v{TC+r}")
    a("s_nop 7")
    for r in range(16):
        a(f"v_mul_f32 v{T0}, v{DIM+r}, v{TS+r}")
        a(f"v_mul_f32 v{TS+r}, v{DRE+r}, v{TS+r}")
        a(f"v_fma_f32 v{DRE+r}, v{DRE+r}, v{TC+r}, -v{T0}")
        a(f"v_fma_f32 v{DIM+r}, v{DIM+r}, v{TC+r}, v{TS+r}")
    for r in range(8):
        a(f"v_cvt_pk_bf16_f32 v{TRE+r}, v{DRE+2*r}, v{DRE+2*r+1}")
        a(f"v_cvt_pk_bf16_f32 v{TIM+r}, v{DIM+2*r}, v{DIM+2*r+1}")
    a("s_nop 1")
    tre = lambda k: vr(TRE + 4*k, 4); tim = lambda k: vr(TIM + 4*k, 4)
    a(f"v_mfma_f32_32x32x16_bf16 {vr(ZRE,16)}, {tre(0)}, {g(GRE,0)}, 0")
    a(f"v_mfma_f32_32x32x16_bf16 {vr(ZIM,16)}, {tre(0)}, {g(NGIM,0)}, 0")
    a(f"v_mfma_f32_32x32x16_bf16 {vr(ZRE,16)}, {tre(1)}, {g(GRE,1)}, {vr(ZRE,16)}")
    a(f"v_mfma_f32_32x32x16_bf16 {vr(ZIM,16)}, {tre(1)}, {g(NGIM,1)}, {vr(ZIM,16)}")
    a(f"v_mfma_f32_32x32x16_bf16 {vr(ZRE,16)}, {tim(0)}, {g(NGIM,0)}, {vr(ZRE,16)}")
    a(f"v_mfma_f32_32x32x16_bf16 {vr(ZIM,16)}, {tim(0)}, {g(NGRE,0)}, {vr(ZIM,16)}")
    a(f"v_mfma_f32_32x32x16_bf16 {vr(ZRE,16)}, {tim(1)}, {g(NGIM,1)}, {vr(ZRE,16)}")
    a(f"v_mfma_f32_32x32x16_bf16 {vr(ZIM,16)}, {tim(1)}, {g(NGRE,1)}, {vr(ZIM,16)}")
    a("s_nop 15")
    for r in range(8):
        a(f"v_cvt_pk_bf16_f32 v{16+r}, v{ZRE+2*r}, v{ZRE+2*r+1}")
    for r in range(8):
        a(f"v_cvt_pk_bf16_f32 v{24+r}, v{ZIM+2*r}, v{ZIM+2*r+1}")
    a(f"buffer_store_dwordx4 {vr(16,4)}, v{VZ}, s[16:19], 0 offen {zflags}")
    a(f"buffer_store_dwordx4 {vr(20,4)}, v{VZ}, s[16:19], 0 offen offset:1024 {zflags}")
    a(f"v_add_u32 v{VZ}, {64*2048}, v{VZ}")
    a(f"buffer_store_dwordx4 {vr(24,4)}, v{VZ}, s[16:19], 0 offen {zflags}")
    a(f"buffer_store_dwordx4 {vr(28,4)}, v{VZ}, s[16:19], 0 offen offset:1024 {zflags}")

def b_pass2(a, jid, swre, swim, sout, sws, prof=False):
    T0, T1, T2, T3 = 1, 2, 3, 4
    VD = 5; RA = 6; VW = 7; VO = 8
    WF = 16
    ZF = 48
    ACC = 80
    a(f"s_and_b32 s20, {jid}, 7")
    a(f"s_bfe_u32 s21, {jid}, 0x20003")
    a("s_lshl_b32 s21, s21, 3")
    a("s_add_u32 s20, s20, s21")
    a(f"s_lshr_b32 s21, {jid}, 5")
    a("s_and_b32 s22, s25, 3")
    a("s_lshr_b32 s23, s25, 2")
    srd_off(a, 28, sws, WS_Z, WS_Z_SIZE)
    a(f"v_lshrrev_b32 v{T0}, 4, v0")
    a(f"v_and_b32 v{T1}, 15, v0")
    a(f"v_lshlrev_b32 v{T2}, 1, v{T0}")
    a(f"v_xor_b32 v{T1}, v{T1}, v{T2}")
    a(f"v_lshrrev_b32 v{T2}, 3, v{T1}")
    a(f"v_lshlrev_b32 v{T2}, 10, v{T2}")
    a(f"v_and_b32 v{T1}, 7, v{T1}")
    a(f"v_lshlrev_b32 v{T1}, 4, v{T1}")
    a(f"v_add_u32 v{T1}, v{T1}, v{T2}")
    a(f"v_lshlrev_b32 v{T0}, 11, v{T0}")
    a(f"v_add_u32 v{T0}, v{T0}, v{T1}")
    a("s_lshl_b32 s26, s20, 18")
    a("s_lshl_b32 s27, s25, 15")
    a("s_add_u32 s26, s26, s27")
    a("s_lshl_b32 s27, s21, 7")
    a("s_add_u32 s26, s26, s27")
    a(f"v_add_u32 v{VD}, s26, v{T0}")
    a("s_lshl_b32 s24, s25, 12")
    a("s_mov_b32 s26, 0")
    for i in range(4):
        a(f"s_add_u32 m0, s24, {i*1024}")
        a("s_nop 0")
        a(f"buffer_load_dwordx4 v{VD}, s[28:31], s26 offen lds")
        a(f"s_add_u32 s26, s26, {4*2048}")
    srd(a, 12, swre, 2048 * 2048 * 2)
    srd(a, 16, swim, 2048 * 2048 * 2)
    a(f"v_and_b32 v{T0}, 31, v0")
    a("s_lshl_b32 s26, s23, 5")
    a(f"v_add_u32 v{T0}, s26, v{T0}")
    a(f"v_lshlrev_b32 v{T0}, 5, v{T0}")
    a(f"v_add_u32 v{T0}, s20, v{T0}")
    a(f"v_lshlrev_b32 v{T0}, 12, v{T0}")
    a(f"v_lshrrev_b32 v{T1}, 5, v0")
    a(f"v_lshlrev_b32 v{T1}, 4, v{T1}")
    a(f"v_add_u32 v{VW}, v{T0}, v{T1}")
    for ks in range(4):
        a(f"buffer_load_dwordx4 {vr(WF+4*ks,4)}, v{VW}, s[12:15], 0 offen offset:{ks*32}")
    for ks in range(4):
        a(f"buffer_load_dwordx4 {vr(WF+16+4*ks,4)}, v{VW}, s[16:19], 0 offen offset:{ks*32}")
    a("s_lshl_b32 s26, s21, 2")
    a("s_add_u32 s26, s26, s22")
    a("s_lshl_b32 s26, s26, 6")
    a("s_add_u32 s26, s26, 2048")
    a(f"v_add_u32 v{VO}, s26, v{VW}")
    a(f"v_lshrrev_b32 v{T0}, 5, v0")
    a(f"v_lshlrev_b32 v{T0}, 3, v{T0}")
    a(f"v_bfe_u32 v{T1}, v0, 2, 2")
    a(f"v_add_u32 v{T0}, v{T0}, v{T1}")
    a(f"v_lshlrev_b32 v{T0}, 8, v{T0}")
    a(f"v_lshlrev_b32 v{T1}, 1, v{T1}")
    a(f"v_bfe_u32 v{T2}, v0, 4, 1")
    a(f"v_lshlrev_b32 v{T2}, 3, v{T2}")
    a(f"v_bfe_u32 v{T3}, v0, 1, 1")
    a(f"v_add_u32 v{T2}, v{T2}, v{T3}")
    a("s_lshl_b32 s26, s22, 1")
    a(f"v_add_u32 v{T2}, s26, v{T2}")
    a(f"v_xor_b32 v{T2}, v{T2}, v{T1}")
    a(f"v_lshlrev_b32 v{T2}, 4, v{T2}")
    a(f"v_add_u32 v{T0}, v{T0}, v{T2}")
    a(f"v_and_b32 v{T1}, 1, v0")
    a(f"v_lshlrev_b32 v{T1}, 3, v{T1}")
    a(f"v_add_u32 v{RA}, v{T0}, v{T1}")
    a("s_waitcnt vmcnt(8)")
    a("s_barrier")
    if prof: a("s_memtime s[64:65]")
    for ks in range(8):
        for t in range(2):
            a(f"ds_read_b64_tr_b16 {vr(ZF+4*ks+2*t,2)}, v{RA} offset:{(16*ks + 4*t)*256}")
    a("s_waitcnt vmcnt(0) lgkmcnt(0)")
    for ks in range(8):
        c = "0" if ks == 0 else vr(ACC, 16)
        a(f"v_mfma_f32_32x32x16_bf16 {vr(ACC,16)}, {vr(ZF+4*ks,4)}, {vr(WF+4*ks,4)}, {c}")
    a("s_nop 15")
    for r in range(8):
        a(f"v_cvt_pk_bf16_f32 v{16+r}, v{ACC+2*r}, v{ACC+2*r+1}")
    srd(a, 12, sout, 2048 * 2048 * 2)
    a(f"buffer_store_dwordx4 {vr(16,4)}, v{VO}, s[12:15], 0 offen")
    a(f"buffer_store_dwordx4 {vr(20,4)}, v{VO}, s[12:15], 0 offen offset:32")

def gen_bp1(a, name="bp1_kernel", prof=False):
    kernel_header(a, name)
    a("s_cmp_ge_u32 s2, 256")
    a(f"s_cbranch_scc1 {name}_done")
    if prof:
        a("s_memrealtime s[60:61]")
        a("s_memtime s[62:63]")
    a("s_load_dwordx2 s[4:5], s[0:1], 24")
    a("s_load_dwordx2 s[8:9], s[0:1], 80")
    a("v_lshrrev_b32 v1, 6, v0")
    a("v_and_b32 v0, 63, v0")
    a("v_readfirstlane_b32 s25, v1")
    a("s_waitcnt lgkmcnt(0)")
    b_pass1(a, "s2", 4, 8, prof=prof)
    if prof: a("s_memtime s[66:67]")
    a("s_waitcnt vmcnt(0)")
    if prof: prof_tail(a, 8, 203, "s25")
    a.label(f"{name}_done")
    a("s_endpgm")
    return kernel_desc(name, 128, 80)

def gen_bp2(a, name="bp2_kernel", prof=False):
    kernel_header(a, name)
    a("s_cmp_ge_u32 s2, 256")
    a(f"s_cbranch_scc1 {name}_done")
    if prof:
        a("s_memrealtime s[60:61]")
        a("s_memtime s[62:63]")
    a("s_load_dwordx4 s[4:7], s[0:1], 32")
    a("s_load_dwordx2 s[8:9], s[0:1], 80")
    a("s_load_dwordx2 s[10:11], s[0:1], 64")
    a("v_lshrrev_b32 v1, 6, v0")
    a("v_and_b32 v0, 63, v0")
    a("v_readfirstlane_b32 s25, v1")
    a("s_waitcnt lgkmcnt(0)")
    b_pass2(a, "s2", 4, 6, 10, 8, prof=prof)
    if prof: a("s_memtime s[66:67]")
    a("s_waitcnt vmcnt(0)")
    if prof: prof_tail(a, 8, 204, "s25")
    a.label(f"{name}_done")
    a("s_endpgm")
    return kernel_desc(name, 128, 80)
```

```python
from asmlib import *
from gen_qkv import WS_OF, WS_A_SIZE

def gen_oproj(a, name="oproj_kernel", prof=False):
    kernel_header(a, name)
    L = lambda x: f"{name}_{x}"
    LANE = 0
    WA0 = 2; WA1 = 3; VL16 = 4; T0 = 5; T1 = 6; T2 = 7; VO = 8
    WF = [16, 24]
    ACC = 32
    OF = 64
    a("s_cmp_ge_u32 s2, 256")
    a(f"s_cbranch_scc1 {L('done')}")
    if prof:
        a("s_memrealtime s[60:61]")
        a("s_memtime s[62:63]")
    a("s_load_dwordx2 s[4:5], s[0:1], 16")
    a("s_load_dwordx2 s[6:7], s[0:1], 64")
    a("s_load_dwordx2 s[8:9], s[0:1], 80")
    a("s_and_b32 s20, s2, 7")
    a("s_lshr_b32 s21, s2, 3")
    a("s_lshr_b32 s22, s20, 1")
    a("s_lshl_b32 s22, s22, 2")
    a("s_and_b32 s23, s21, 3")
    a("s_add_u32 s22, s22, s23")
    a("s_and_b32 s23, s20, 1")
    a("s_lshl_b32 s23, s23, 3")
    a("s_lshr_b32 s24, s21, 2")
    a("s_add_u32 s23, s23, s24")
    a("v_lshrrev_b32 v1, 6, v0")
    a("v_and_b32 v0, 63, v0")
    a("v_readfirstlane_b32 s25, v1")
    a(f"v_lshlrev_b32 v{VL16}, 4, v0")
    a("s_and_b32 s26, s25, 3")
    a("s_lshr_b32 s27, s25, 2")
    a(f"v_lshrrev_b32 v{T0}, 3, v0")
    a(f"v_lshlrev_b32 v{T0}, 11, v{T0}")
    a(f"v_and_b32 v{T1}, 7, v0")
    a(f"v_bfe_u32 v{T2}, v0, 4, 1")
    a(f"v_lshlrev_b32 v{T2}, 2, v{T2}")
    a(f"v_xor_b32 v{T1}, v{T1}, v{T2}")
    a(f"v_lshlrev_b32 v{T1}, 4, v{T1}")
    a(f"v_add_u32 v{T0}, v{T0}, v{T1}")
    a("s_lshl_b32 s28, s23, 7")
    a("s_lshl_b32 s29, s25, 18")
    a("s_add_u32 s28, s28, s29")
    a(f"v_add_u32 v{T0}, s28, v{T0}")
    a("s_lshl_b32 s30, s25, 14")
    a("s_waitcnt lgkmcnt(0)")
    srd(a, 12, 4, 1024 * 1024 * 2)
    srd(a, 16, 8, WS_A_SIZE)
    a("s_mov_b32 s31, 0")
    for i in range(16):
        a(f"s_add_u32 m0, s30, {i*1024}")
        a("s_nop 0")
        a(f"buffer_load_dwordx4 v{T0}, s[12:15], s31 offen lds")
        a(f"s_add_u32 s31, s31, {8*2048}")
    a("s_lshl_b32 s28, s22, 2")
    a("s_add_u32 s28, s28, s26")
    a("s_lshl_b32 s28, s28, 6")
    a("s_lshl_b32 s29, s27, 5")
    a("s_add_u32 s28, s28, s29")
    a("s_lshl_b32 s28, s28, 10")
    a(f"s_add_u32 s28, s28, {hex(WS_OF)}")
    for i in range(32):
        a(f"buffer_load_dwordx4 {vr(OF+4*i,4)}, v{VL16}, s[16:19], s28 offen offset:{(i&3)*1024}")
        if (i & 3) == 3 and i < 31: a("s_add_u32 s28, s28, 4096")
    a(f"v_lshrrev_b32 v{T0}, 5, v0")
    a(f"v_lshlrev_b32 v{T0}, 2, v{T0}")
    a(f"v_bfe_u32 v{T1}, v0, 2, 2")
    a(f"v_add_u32 v{T0}, v{T0}, v{T1}")
    a(f"v_lshlrev_b32 v{T0}, 7, v{T0}")
    a(f"v_bfe_u32 v{T1}, v0, 4, 1")
    a(f"v_lshlrev_b32 v{T1}, 1, v{T1}")
    a(f"v_and_b32 v{T2}, 1, v0")
    a(f"v_add_u32 v{T1}, v{T1}, v{T2}")
    a(f"v_bfe_u32 v{T2}, v0, 3, 1")
    a(f"v_lshlrev_b32 v{T2}, 2, v{T2}")
    a(f"v_xor_b32 v{T1}, v{T1}, v{T2}")
    a(f"v_lshlrev_b32 v{T1}, 4, v{T1}")
    a(f"v_add_u32 v{T0}, v{T0}, v{T1}")
    a(f"v_bfe_u32 v{T1}, v0, 1, 1")
    a(f"v_lshlrev_b32 v{T1}, 3, v{T1}")
    a(f"v_add_u32 v{T0}, v{T0}, v{T1}")
    a("s_lshl_b32 s29, s27, 16")
    a(f"v_add_u32 v{WA0}, s29, v{T0}")
    a(f"v_xor_b32 v{WA1}, 64, v{WA0}")
    a(f"v_and_b32 v{VO}, 31, v0")
    a("s_lshl_b32 s28, s22, 7")
    a("s_lshl_b32 s29, s26, 5")
    a("s_add_u32 s28, s28, s29")
    a(f"v_add_u32 v{VO}, s28, v{VO}")
    a(f"v_lshlrev_b32 v{VO}, 12, v{VO}")
    a(f"v_lshrrev_b32 v{T0}, 5, v0")
    a(f"v_lshlrev_b32 v{T0}, 4, v{T0}")
    a(f"v_add_u32 v{VO}, v{VO}, v{T0}")
    a("s_lshl_b32 s28, s23, 7")
    a("s_lshl_b32 s29, s27, 6")
    a("s_add_u32 s28, s28, s29")
    a(f"v_add_u32 v{VO}, s28, v{VO}")
    def wreads(ks, fs):
        r = []
        for ct in range(2):
            for t in range(2):
                r.append(f"ds_read_b64_tr_b16 {vr(fs + 4*ct + 2*t, 2)}, v{[WA0, WA1][ct]} offset:{ks*2048 + t*1024}")
        return r
    a("s_waitcnt vmcnt(32)")
    a("s_barrier")
    if prof: a("s_memtime s[64:65]")
    for r in wreads(0, WF[0]): a(r)
    for ks in range(32):
        cur = WF[ks & 1]; nxt = WF[1 - (ks & 1)]
        rd = wreads(ks + 1, nxt) if ks < 31 else []
        a(f"s_waitcnt vmcnt({31 - ks}) lgkmcnt(0)")
        for ct in range(2):
            d = vr(ACC + 16*ct, 16)
            c = "0" if ks == 0 else d
            a(f"v_mfma_f32_32x32x16_bf16 {d}, {vr(cur + 4*ct, 4)}, {vr(OF + 4*ks, 4)}, {c}")
            for q in rd[2*ct:2*ct+2]: a(q)
    if prof: a("s_memtime s[66:67]")
    a("s_barrier")
    a("s_lshl_b32 s28, s25, 12")
    a(f"v_add_u32 v{T0}, s28, v{VL16}")
    a("s_xor_b32 s28, s28, 0x4000")
    a(f"v_add_u32 v{T1}, s28, v{VL16}")
    a("s_nop 15")
    a("s_cmp_eq_u32 s27, 0")
    a(f"s_cbranch_scc1 {L('k0')}")
    for q in range(4): a(f"ds_write_b128 v{T0}, {vr(ACC + 4*q, 4)} offset:{q*1024}")
    for r in range(16): a(f"v_mov_b32 v{ACC + r}, v{ACC + 16 + r}")
    a(f"s_branch {L('k1')}")
    a.label(L("k0"))
    for q in range(4): a(f"ds_write_b128 v{T0}, {vr(ACC + 16 + 4*q, 4)} offset:{q*1024}")
    a.label(L("k1"))
    a("s_waitcnt lgkmcnt(0)")
    a("s_barrier")
    for q in range(4): a(f"ds_read_b128 {vr(OF + 4*q, 4)}, v{T1} offset:{q*1024}")
    a("s_waitcnt lgkmcnt(0)")
    for r in range(16): a(f"v_add_f32 v{ACC + r}, v{ACC + r}, v{OF + r}")
    for r in range(8): a(f"v_cvt_pk_bf16_f32 v{OF + 16 + r}, v{ACC + 2*r}, v{ACC + 2*r + 1}")
    srd(a, 12, 6, 2048 * 2048 * 2)
    a(f"buffer_store_dwordx4 {vr(OF + 16, 4)}, v{VO}, s[12:15], 0 offen")
    a(f"buffer_store_dwordx4 {vr(OF + 20, 4)}, v{VO}, s[12:15], 0 offen offset:32")
    a("s_waitcnt vmcnt(0)")
    if prof:
        a("s_memtime s[68:69]")
        a("s_memrealtime s[70:71]")
        a("s_waitcnt lgkmcnt(0)")
        srd_off(a, 12, 8, 202 << 20, 1 << 20)
        a("s_sub_u32 s64, s64, s62")
        a("s_sub_u32 s66, s66, s62")
        a("s_sub_u32 s68, s68, s62")
        a("v_mov_b32 v16, s60")
        a("v_mov_b32 v17, s70")
        a("v_mov_b32 v18, s64")
        a("v_mov_b32 v19, s66")
        a("v_mov_b32 v20, s68")
        a("v_mov_b32 v21, 0")
        a("v_mov_b32 v22, 0")
        a("v_mov_b32 v23, 0")
        a("s_lshl_b32 s28, s2, 3")
        a("s_add_u32 s28, s28, s25")
        a("s_lshl_b32 s28, s28, 5")
        a("v_mov_b32 v8, s28")
        a("v_cmp_eq_u32 vcc, 0, v0")
        a("s_and_saveexec_b64 s[30:31], vcc")
        a("buffer_store_dwordx4 v[16:19], v8, s[12:15], 0 offen")
        a("buffer_store_dwordx4 v[20:23], v8, s[12:15], 0 offen offset:16")
        a("s_waitcnt vmcnt(0)")
    a.label(L("done"))
    a("s_endpgm")
    return kernel_desc(name, 192, 80)
```

```python
from asmlib import *
import struct, math

WS_QF = 0
WS_KV = 4 << 20
WS_OF = 12 << 20
WS_A_SIZE = 16 << 20
QSCALE = math.log2(math.e) / math.sqrt(32.0)
def f32hex(x): return hex(struct.unpack("<I", struct.pack("<f", x))[0])

def gen_qkv(a, NSLOT=4, name="qkv_kernel", prof=False):
    STAGE = 40960
    NSTEP = 16
    kernel_header(a, name)
    L_done = name + "_done"; L_loader = name + "_loader"
    a(f"s_cmp_ge_u32 s2, 256")
    a(f"s_cbranch_scc1 {L_done}")
    if prof:
        a("s_memrealtime s[60:61]")
        a("s_memtime s[62:63]")
    a("s_load_dwordx4 s[4:7], s[0:1], 0")
    a("s_load_dwordx2 s[8:9], s[0:1], 80")
    a("s_and_b32 s20, s2, 7")
    a("s_lshr_b32 s21, s2, 3")
    a("s_and_b32 s22, s20, 1")
    a("s_lshl_b32 s22, s22, 3")
    a("s_and_b32 s23, s21, 7")
    a("s_add_u32 s22, s22, s23")
    a("s_lshr_b32 s23, s20, 1")
    a("s_lshl_b32 s23, s23, 2")
    a("s_lshr_b32 s24, s21, 3")
    a("s_add_u32 s23, s23, s24")
    a("v_lshrrev_b32 v1, 6, v0")
    a("v_and_b32 v2, 63, v0")
    a("v_readfirstlane_b32 s25, v1")
    a("s_waitcnt lgkmcnt(0)")
    a("s_cmp_ge_u32 s25, 4")
    a(f"s_cbranch_scc1 {L_loader}")

    lane = 2
    XA = [3, 4, 5, 6]; WA = 7
    FS = [16, 36]
    ACC = 64
    def acc(ms, sec): return ACC + (ms * 3 + sec) * 16
    a("s_lshr_b32 s26, s25, 1")
    a("s_and_b32 s27, s25, 1")
    a(f"v_and_b32 v8, 31, v{lane}")
    a("s_lshl_b32 s28, s26, 6")
    a("v_add_u32 v8, s28, v8")
    a("v_lshlrev_b32 v8, 7, v8")
    a(f"v_lshrrev_b32 v9, 5, v{lane}")
    a(f"v_bfe_u32 v10, v{lane}, 1, 3")
    a("v_xor_b32 v9, v9, v10")
    for kk in range(4):
        a(f"v_xor_b32 v11, {2*kk}, v9")
        a(f"v_lshlrev_b32 v11, 4, v11")
        a(f"v_add_u32 v{XA[kk]}, v8, v11")
    a(f"v_lshrrev_b32 v8, 5, v{lane}")
    a("v_lshlrev_b32 v8, 3, v8")
    a(f"v_bfe_u32 v9, v{lane}, 2, 2")
    a("v_add_u32 v8, v8, v9")
    a("v_lshlrev_b32 v8, 7, v8")
    a(f"v_bfe_u32 v9, v{lane}, 4, 1")
    a("v_lshlrev_b32 v9, 1, v9")
    a(f"v_bfe_u32 v10, v{lane}, 1, 1")
    a("v_add_u32 v9, v9, v10")
    a("s_lshl_b32 s28, s27, 2")
    a("v_add_u32 v9, s28, v9")
    a(f"v_bfe_u32 v10, v{lane}, 3, 1")
    a("v_lshlrev_b32 v10, 2, v10")
    a("v_xor_b32 v9, v9, v10")
    a("v_lshlrev_b32 v9, 4, v9")
    a("v_add_u32 v8, v8, v9")
    a(f"v_and_b32 v9, 1, v{lane}")
    a("v_lshlrev_b32 v9, 3, v9")
    a("v_add_u32 v8, v8, v9")
    a(f"v_add_u32 v{WA}, 16384, v8")

    def reads(kk, fs):
        r = []
        for ms in range(2):
            r.append(f"ds_read_b128 {vr(fs + 4*ms, 4)}, v{XA[kk]} offset:{ms*4096}")
        for sec in range(3):
            for t in range(2):
                r.append(f"ds_read_b64_tr_b16 {vr(fs + 8 + 4*sec + 2*t, 2)}, v{WA} offset:{sec*8192 + kk*2048 + t*512}")
        return r
    def mfmas(fs, first):
        m = []
        for sec in range(3):
            for ms in range(2):
                xf = vr(fs + 4*ms, 4); wf = vr(fs + 8 + 4*sec, 4)
                d = vr(acc(ms, sec), 16)
                c = "0" if first else d
                if sec < 2: m.append(f"v_mfma_f32_32x32x16_bf16 {d}, {wf}, {xf}, {c}")
                else:       m.append(f"v_mfma_f32_32x32x16_bf16 {d}, {xf}, {wf}, {c}")
        return m

    a("s_barrier")
    if prof:
        a("s_memtime s[64:65]")
    for r in reads(0, FS[0]): a(r)
    for step in range(NSTEP):
        for kk in range(4):
            cur = FS[kk & 1]; nxt = FS[(kk + 1) & 1]
            a("s_waitcnt lgkmcnt(0)")
            rd = []
            if kk == 3:
                if step < NSTEP - 1:
                    a("s_barrier")
                    slot = step % NSLOT
                    delta = STAGE if slot < NSLOT - 1 else -(NSLOT - 1) * STAGE
                    for r_ in XA + [WA]:
                        a(f"v_add_u32 v{r_}, {hex(delta & 0xffffffff)}, v{r_}")
                    rd = reads(0, nxt)
            else:
                rd = reads(kk + 1, nxt)
            mm = mfmas(cur, step == 0 and kk == 0)
            ri = 0
            for mi, m in enumerate(mm):
                a(m)
                for _ in range(2):
                    if ri < len(rd):
                        a(rd[ri]); ri += 1
            assert ri == len(rd)
    if prof:
        a("s_memtime s[66:67]")
    a("s_nop 15")
    srd(a, 12, 8, WS_A_SIZE)
    a("s_lshl_b32 s28, s23, 1")
    a("s_add_u32 s28, s28, s27")
    a("s_lshl_b32 s29, s22, 2")
    a("s_lshl_b32 s30, s26, 1")
    a("s_add_u32 s29, s29, s30")
    a("s_lshl_b32 s28, s28, 6")
    a("s_add_u32 s28, s28, s29")
    a("s_lshl_b32 s30, s28, 11")
    a("s_lshl_b32 s31, s28, 12")
    a(f"s_add_u32 s31, s31, {hex(WS_KV)}")
    a(f"v_lshlrev_b32 v8, 4, v{lane}")
    T = 16
    qs = f32hex(QSCALE)
    for ms in range(2):
        for sec in range(3):
            b = acc(ms, sec)
            if sec == 0:
                for r in range(16):
                    a(f"v_mul_f32 v{b+r}, {qs}, v{b+r}")
            tb = T + ((ms * 3 + sec) % 3) * 8
            for r in range(8):
                a(f"v_cvt_pk_bf16_f32 v{tb + r}, v{b + 2*r}, v{b + 2*r + 1}")
            if sec == 0:
                off = ms * 2048; so = "s30"
            elif sec == 1:
                off = ms * 4096; so = "s31"
            else:
                off = ms * 4096 + 2048; so = "s31"
            for f in range(2):
                o = off + f * 1024
                if o < 4096:
                    a(f"buffer_store_dwordx4 {vr(tb + 4*f, 4)}, v8, s[12:15], {so} offen offset:{o}")
                else:
                    a(f"buffer_store_dwordx4 {vr(tb + 4*f, 4)}, v9, s[12:15], {so} offen offset:{o - 4096}")
            if ms == 0 and sec == 0:
                a("v_add_u32 v9, 4096, v8")
    a("s_waitcnt vmcnt(0)")
    if prof:
        a("s_memtime s[68:69]")
        a("s_memrealtime s[70:71]")
        a("s_waitcnt lgkmcnt(0)")
        srd_off(a, 12, 8, 200 << 20, 1 << 20)
        a("s_sub_u32 s64, s64, s62")
        a("s_sub_u32 s66, s66, s62")
        a("s_sub_u32 s68, s68, s62")
        a("v_mov_b32 v16, s60")
        a("v_mov_b32 v17, s70")
        a("v_mov_b32 v18, s64")
        a("v_mov_b32 v19, s66")
        a("v_mov_b32 v20, s68")
        a("v_mov_b32 v21, s25")
        a("v_mov_b32 v22, 0")
        a("v_mov_b32 v23, 0")
        a("s_lshl_b32 s28, s2, 2")
        a("s_add_u32 s28, s28, s25")
        a("s_lshl_b32 s28, s28, 5")
        a("v_mov_b32 v8, s28")
        a("v_cmp_eq_u32 vcc, 0, v2")
        a("s_and_saveexec_b64 s[30:31], vcc")
        a("buffer_store_dwordx4 v[16:19], v8, s[12:15], 0 offen")
        a("buffer_store_dwordx4 v[20:23], v8, s[12:15], 0 offen offset:16")
        a("s_waitcnt vmcnt(0)")
    a("s_endpgm")

    a.label(L_loader)
    a("s_sub_u32 s25, s25, 4")
    srd(a, 12, 4, 2048 * 1024 * 2)
    srd(a, 16, 6, 1024 * 3072 * 2)
    VX = [3, 4, 5, 6]; VW = [8, 9, 10, 11, 12, 13]
    a(f"v_lshrrev_b32 v14, 3, v{lane}")
    a("s_lshl_b32 s28, s22, 7")
    a("s_lshl_b32 s29, s25, 5")
    a("s_add_u32 s28, s28, s29")
    a("v_add_u32 v14, s28, v14")
    a("v_lshlrev_b32 v14, 11, v14")
    a(f"v_and_b32 v15, 7, v{lane}")
    a(f"v_lshrrev_b32 v16, 4, v{lane}")
    a("v_xor_b32 v17, v15, v16")
    a("v_xor_b32 v18, 4, v17")
    a("v_lshlrev_b32 v17, 4, v17")
    a("v_lshlrev_b32 v18, 4, v18")
    for i in range(4):
        a(f"v_add_u32 v{VX[i]}, v14, v{17 + (i & 1)}")
        if i: a(f"v_add_u32 v{VX[i]}, {i * 16384}, v{VX[i]}")
    a(f"v_lshrrev_b32 v14, 3, v{lane}")
    a("v_mul_u32_u24 v14, 6144, v14")
    a(f"v_bfe_u32 v16, v{lane}, 4, 1")
    a("v_lshlrev_b32 v16, 2, v16")
    a("v_xor_b32 v16, v15, v16")
    a("v_lshlrev_b32 v16, 4, v16")
    a("v_add_u32 v14, v14, v16")
    a("s_lshl_b32 s28, s23, 7")
    a("v_add_u32 v14, s28, v14")
    for i in range(6):
        a(f"s_mul_i32 s28, s25, 6")
        a(f"s_add_u32 s28, s28, {i}")
        a("s_lshr_b32 s29, s28, 3")
        a("s_and_b32 s30, s28, 7")
        a("s_lshl_b32 s29, s29, 11")
        a(f"s_mul_i32 s30, s30, {8*6144}")
        a("s_add_u32 s29, s29, s30")
        a(f"v_add_u32 v{VW[i]}, s29, v14")
    a("s_lshl_b32 s32, s25, 12")
    a("s_mul_i32 s33, s25, 6144")
    a("s_add_u32 s33, s33, 16384")
    a("s_mov_b32 s34, 0")
    a("s_mov_b32 s35, 0")
    def issue(stage):
        slot = (stage % NSLOT) * STAGE
        for i in range(4):
            a(f"s_add_u32 m0, s32, {slot + i * 1024}")
            a("s_nop 0")
            a(f"buffer_load_dwordx4 v{VX[i]}, s[12:15], s34 offen lds")
        for i in range(6):
            a(f"s_add_u32 m0, s33, {slot + i * 1024}")
            a("s_nop 0")
            a(f"buffer_load_dwordx4 v{VW[i]}, s[16:19], s35 offen lds")
        a("s_add_u32 s34, s34, 128")
        a(f"s_add_u32 s35, s35, {64 * 6144}")
    for st in range(NSLOT): issue(st)
    a(f"s_waitcnt vmcnt({(NSLOT - 1) * 10})")
    a("s_barrier")
    for i in range(NSTEP - 1):
        last_issued = min(i + NSLOT - 1, NSTEP - 1)
        newer = last_issued - (i + 1)
        a(f"s_waitcnt vmcnt({newer * 10})")
        a("s_barrier")
        if i + NSLOT < NSTEP: issue(i + NSLOT)
    a.label(L_done)
    a("s_endpgm")
    return kernel_desc(name, 160, 80)

if __name__ == "__main__":
    a = Asm()
    NSLOT = 4
    a.raw(f"; @launch kernel=qkv_kernel grid=(256,1,1) block=(512,1,1) lds={NSLOT*40960}")
    a.raw('.amdgcn_target "amdgcn-amd-amdhsa--gfx950"')
    a.raw(".text")
    import sys
    d = gen_qkv(a, NSLOT, prof=(len(sys.argv) > 1))
    a.raw('.section .rodata,"a"')
    a.raw(".p2align 6")
    a.raw(d)
    open("qkv_only.s", "w").write(a.text())
```

```python
import sys
from asmlib import *
from gen_qkv import gen_qkv
from gen_attn import gen_attn
from gen_oproj import gen_oproj
from gen_b import gen_bp1, gen_bp2
prof = "prof" in sys.argv
out = [x for x in sys.argv[1:] if x.endswith(".s")]
out = out[0] if out else "all.s"
a = Asm()
NSLOT = 4
hdr = open("concat_heads__mha_block__spectral_fnet__prompt.s.ref").read().split("\n")
for ln in hdr:
    if ln.startswith("; Override") : break
    a.raw(ln)
a.raw(f"; @launch kernel=qkv_kernel grid=(256,1,1) block=(512,1,1) lds={NSLOT*40960}")
a.raw(f"; @launch kernel=attn_kernel grid=(256,1,1) block=(512,1,1) lds={65536+64}")
a.raw(f"; @launch kernel=oproj_kernel grid=(256,1,1) block=(512,1,1) lds=131072")
a.raw(f"; @launch kernel=bp1_kernel grid=(256,1,1) block=(512,1,1) lds=65536")
a.raw(f"; @launch kernel=bp2_kernel grid=(256,1,1) block=(512,1,1) lds=32768")
a.raw('.amdgcn_target "amdgcn-amd-amdhsa--gfx950"')
a.raw(".text")
ds = [gen_qkv(a, NSLOT, prof=prof), gen_attn(a, prof=prof), gen_oproj(a, prof=prof), gen_bp1(a, prof=prof), gen_bp2(a, prof=prof)]
a.raw('.section .rodata,"a"')
for d in ds:
    a.raw(".p2align 6")
    a.raw(d)
open(out, "w").write(a.text())
```

```python
from asmlib import *
import struct, math

WS_QF = 0
WS_KV = 4 << 20
WS_OF = 12 << 20
WS_A_SIZE = 16 << 20
QSCALE = math.log2(math.e) / math.sqrt(32.0)
def f32hex(x): return hex(struct.unpack("<I", struct.pack("<f", x))[0])

def gen_qkv(a, NSLOT=4, name="qkv_kernel", prof=False, prof2=False, prefetch=1):
    STAGE = 40960
    NSTEP = 16
    kernel_header(a, name)
    L_done = name + "_done"; L_loader = name + "_loader"
    a(f"s_cmp_ge_u32 s2, 256")
    a(f"s_cbranch_scc1 {L_done}")
    if prof:
        a("s_memrealtime s[60:61]")
        a("s_memtime s[62:63]")
    a("s_load_dwordx4 s[4:7], s[0:1], 0")
    a("s_load_dwordx2 s[8:9], s[0:1], 80")
    a("s_and_b32 s20, s2, 7")
    a("s_lshr_b32 s21, s2, 3")
    a("s_and_b32 s22, s20, 1")
    a("s_lshl_b32 s22, s22, 3")
    a("s_and_b32 s23, s21, 7")
    a("s_add_u32 s22, s22, s23")
    a("s_lshr_b32 s23, s20, 1")
    a("s_lshl_b32 s23, s23, 2")
    a("s_lshr_b32 s24, s21, 3")
    a("s_add_u32 s23, s23, s24")
    a("v_lshrrev_b32 v1, 6, v0")
    a("v_and_b32 v2, 63, v0")
    a("v_readfirstlane_b32 s25, v1")
    a("s_waitcnt lgkmcnt(0)")
    a("s_cmp_ge_u32 s25, 4")
    a(f"s_cbranch_scc1 {L_loader}")

    lane = 2
    XA = [3, 4, 5, 6]; WA = 7
    FS = [16, 36]
    ACC = 64
    def acc(ms, sec): return ACC + (ms * 3 + sec) * 16
    a("s_lshr_b32 s26, s25, 1")
    a("s_and_b32 s27, s25, 1")
    a(f"v_and_b32 v8, 31, v{lane}")
    a("s_lshl_b32 s28, s26, 6")
    a("v_add_u32 v8, s28, v8")
    a("v_lshlrev_b32 v8, 7, v8")
    a(f"v_lshrrev_b32 v9, 5, v{lane}")
    a(f"v_bfe_u32 v10, v{lane}, 1, 3")
    a("v_xor_b32 v9, v9, v10")
    for kk in range(4):
        a(f"v_xor_b32 v11, {2*kk}, v9")
        a(f"v_lshlrev_b32 v11, 4, v11")
        a(f"v_add_u32 v{XA[kk]}, v8, v11")
    a(f"v_lshrrev_b32 v8, 5, v{lane}")
    a("v_lshlrev_b32 v8, 3, v8")
    a(f"v_bfe_u32 v9, v{lane}, 2, 2")
    a("v_add_u32 v8, v8, v9")
    a("v_lshlrev_b32 v8, 7, v8")
    a(f"v_bfe_u32 v9, v{lane}, 4, 1")
    a("v_lshlrev_b32 v9, 1, v9")
    a(f"v_bfe_u32 v10, v{lane}, 1, 1")
    a("v_add_u32 v9, v9, v10")
    a("s_lshl_b32 s28, s27, 2")
    a("v_add_u32 v9, s28, v9")
    a(f"v_bfe_u32 v10, v{lane}, 3, 1")
    a("v_lshlrev_b32 v10, 2, v10")
    a("v_xor_b32 v9, v9, v10")
    a("v_lshlrev_b32 v9, 4, v9")
    a("v_add_u32 v8, v8, v9")
    a(f"v_and_b32 v9, 1, v{lane}")
    a("v_lshlrev_b32 v9, 3, v9")
    a("v_add_u32 v8, v8, v9")
    a(f"v_add_u32 v{WA}, 16384, v8")

    def reads(kk, fs):
        r = []
        for ms in range(2):
            r.append(f"ds_read_b128 {vr(fs + 4*ms, 4)}, v{XA[kk]} offset:{ms*4096}")
        for sec in range(3):
            for t in range(2):
                r.append(f"ds_read_b64_tr_b16 {vr(fs + 8 + 4*sec + 2*t, 2)}, v{WA} offset:{sec*8192 + kk*2048 + t*512}")
        return r
    def mfmas(fs, first):
        m = []
        for sec in range(3):
            for ms in range(2):
                xf = vr(fs + 4*ms, 4); wf = vr(fs + 8 + 4*sec, 4)
                d = vr(acc(ms, sec), 16)
                c = "0" if first else d
                if sec < 2: m.append(f"v_mfma_f32_32x32x16_bf16 {d}, {wf}, {xf}, {c}")
                else:       m.append(f"v_mfma_f32_32x32x16_bf16 {d}, {xf}, {wf}, {c}")
        return m

    if prefetch == 1:
        srd(a, 12, 4, 2048 * 1024 * 2)
        srd(a, 16, 6, 1024 * 3072 * 2)
        a("s_lshl_b32 s28, s21, 5")
        a("s_lshl_b32 s29, s25, 3")
        a("s_add_u32 s28, s28, s29")
        a("s_and_b32 s29, s20, 1")
        a("s_lshl_b32 s29, s29, 10")
        a("s_add_u32 s29, s29, s28")
        a("s_lshl_b32 s29, s29, 11")
        a(f"v_lshlrev_b32 v8, 7, v{lane}")
        a("buffer_load_dword v150, v8, s[12:15], s29 offen")
        a("s_add_u32 s29, s29, 8192")
        a("buffer_load_dword v150, v8, s[12:15], s29 offen")
        a(f"v_bfe_u32 v9, v{lane}, 2, 3")
        a("v_mul_u32_u24 v9, 6144, v9")
        a(f"v_and_b32 v10, 3, v{lane}")
        a("v_lshlrev_b32 v10, 7, v10")
        a("v_add_u32 v9, v9, v10")
        a(f"v_lshrrev_b32 v10, 5, v{lane}")
        a("v_lshlrev_b32 v10, 11, v10")
        a("v_add_u32 v10, v9, v10")
        a("s_mul_i32 s29, s28, 6144")
        a("s_lshr_b32 s30, s20, 1")
        a("s_lshl_b32 s30, s30, 9")
        a("s_add_u32 s29, s29, s30")
        a("buffer_load_dword v151, v10, s[16:19], s29 offen")
        a("s_add_u32 s29, s29, 4096")
        a("buffer_load_dword v151, v9, s[16:19], s29 offen")
    elif prefetch == 2:
        srd(a, 12, 4, 2048 * 1024 * 2)
        srd(a, 16, 6, 1024 * 3072 * 2)
        a(f"v_lshlrev_b32 v8, 7, v{lane}")
        a("s_lshl_b32 s28, s2, 14")
        a("s_and_b32 s29, s25, 1")
        a("s_lshl_b32 s29, s29, 13")
        a("s_add_u32 s28, s28, s29")
        a("s_mul_i32 s30, s2, 24576")
        a("s_add_u32 s31, s30, s29")
        a("s_add_u32 s30, s30, 16384")
        a("s_cmp_ge_u32 s25, 2")
        a("s_cbranch_scc1 qkv_pf_w")
        a("buffer_load_dword v150, v8, s[12:15], s28 offen")
        a("s_cmp_eq_u32 s25, 0")
        a("s_cbranch_scc0 qkv_pf_done")
        a("buffer_load_dword v151, v8, s[16:19], s30 offen")
        a("s_branch qkv_pf_done")
        a.label("qkv_pf_w")
        a("buffer_load_dword v150, v8, s[16:19], s31 offen")
        a.label("qkv_pf_done")
    a("s_barrier")
    if prof:
        a("s_memtime s[64:65]")
    for r in reads(0, FS[0]): a(r)
    for step in range(NSTEP):
        if prof2: a("s_memtime s[80:81]")
        for kk in range(4):
            cur = FS[kk & 1]; nxt = FS[(kk + 1) & 1]
            a("s_waitcnt lgkmcnt(0)")
            if prof2 and kk == 0: a(f"s_mov_b32 s{34+step}, s80")
            rd = []
            if kk == 3:
                if step < NSTEP - 1:
                    a("s_barrier")
                    slot = step % NSLOT
                    delta = STAGE if slot < NSLOT - 1 else -(NSLOT - 1) * STAGE
                    for r_ in XA + [WA]:
                        a(f"v_add_u32 v{r_}, {hex(delta & 0xffffffff)}, v{r_}")
                    rd = reads(0, nxt)
            else:
                rd = reads(kk + 1, nxt)
            mm = mfmas(cur, step == 0 and kk == 0)
            ri = 0
            for mi, m in enumerate(mm):
                a(m)
                for _ in range(2):
                    if ri < len(rd):
                        a(rd[ri]); ri += 1
            assert ri == len(rd)
    if prof:
        a("s_memtime s[66:67]")
    a("s_nop 15")
    srd(a, 12, 8, WS_A_SIZE)
    a("s_lshl_b32 s28, s23, 1")
    a("s_add_u32 s28, s28, s27")
    a("s_lshl_b32 s29, s22, 2")
    a("s_lshl_b32 s30, s26, 1")
    a("s_add_u32 s29, s29, s30")
    a("s_lshl_b32 s28, s28, 6")
    a("s_add_u32 s28, s28, s29")
    a("s_lshl_b32 s30, s28, 11")
    a("s_lshl_b32 s31, s28, 12")
    a(f"s_add_u32 s31, s31, {hex(WS_KV)}")
    a(f"v_lshlrev_b32 v8, 4, v{lane}")
    T = 16
    qs = f32hex(QSCALE)
    for ms in range(2):
        for sec in range(3):
            b = acc(ms, sec)
            if sec == 0:
                for r in range(16):
                    a(f"v_mul_f32 v{b+r}, {qs}, v{b+r}")
            tb = T + ((ms * 3 + sec) % 3) * 8
            for r in range(8):
                a(f"v_cvt_pk_bf16_f32 v{tb + r}, v{b + 2*r}, v{b + 2*r + 1}")
            if sec == 0:
                off = ms * 2048; so = "s30"
            elif sec == 1:
                off = ms * 4096; so = "s31"
            else:
                off = ms * 4096 + 2048; so = "s31"
            for f in range(2):
                o = off + f * 1024
                if o < 4096:
                    a(f"buffer_store_dwordx4 {vr(tb + 4*f, 4)}, v8, s[12:15], {so} offen offset:{o}")
                else:
                    a(f"buffer_store_dwordx4 {vr(tb + 4*f, 4)}, v9, s[12:15], {so} offen offset:{o - 4096}")
            if ms == 0 and sec == 0:
                a("v_add_u32 v9, 4096, v8")
    a("s_waitcnt vmcnt(0)")
    if prof:
        a("s_memtime s[68:69]")
        a("s_memrealtime s[70:71]")
        a("s_waitcnt lgkmcnt(0)")
        srd_off(a, 12, 8, 200 << 20, 1 << 20)
        a("s_sub_u32 s64, s64, s62")
        a("s_sub_u32 s66, s66, s62")
        a("s_sub_u32 s68, s68, s62")
        a("v_mov_b32 v16, s60")
        a("v_mov_b32 v17, s70")
        a("v_mov_b32 v18, s64")
        a("v_mov_b32 v19, s66")
        a("v_mov_b32 v20, s68")
        a("v_mov_b32 v21, s25")
        a("v_mov_b32 v22, 0")
        a("v_mov_b32 v23, 0")
        a("s_lshl_b32 s28, s2, 2")
        a("s_add_u32 s28, s28, s25")
        a("s_lshl_b32 s28, s28, 5")
        a("v_mov_b32 v8, s28")
        a("v_cmp_eq_u32 vcc, 0, v2")
        a("s_and_saveexec_b64 s[30:31], vcc")
        a("buffer_store_dwordx4 v[16:19], v8, s[12:15], 0 offen")
        a("buffer_store_dwordx4 v[20:23], v8, s[12:15], 0 offen offset:16")
        if prof2:
            a("v_lshlrev_b32 v8, 1, v8")
            a("v_add_u32 v8, 0x80000, v8")
            for q in range(4):
                for r in range(4):
                    a(f"s_sub_u32 s{34+4*q+r}, s{34+4*q+r}, s62")
                    a(f"v_mov_b32 v{16+r}, s{34+4*q+r}")
                a(f"buffer_store_dwordx4 v[16:19], v8, s[12:15], 0 offen offset:{16*q}")
        a("s_waitcnt vmcnt(0)")
    a("s_endpgm")

    a.label(L_loader)
    a("s_sub_u32 s25, s25, 4")
    srd(a, 12, 4, 2048 * 1024 * 2)
    srd(a, 16, 6, 1024 * 3072 * 2)
    VX = [3, 4, 5, 6]; VW = [8, 9, 10, 11, 12, 13]
    a(f"v_lshrrev_b32 v14, 3, v{lane}")
    a("s_lshl_b32 s28, s22, 7")
    a("s_lshl_b32 s29, s25, 5")
    a("s_add_u32 s28, s28, s29")
    a("v_add_u32 v14, s28, v14")
    a("v_lshlrev_b32 v14, 11, v14")
    a(f"v_and_b32 v15, 7, v{lane}")
    a(f"v_lshrrev_b32 v16, 4, v{lane}")
    a("v_xor_b32 v17, v15, v16")
    a("v_xor_b32 v18, 4, v17")
    a("v_lshlrev_b32 v17, 4, v17")
    a("v_lshlrev_b32 v18, 4, v18")
    for i in range(4):
        a(f"v_add_u32 v{VX[i]}, v14, v{17 + (i & 1)}")
        if i: a(f"v_add_u32 v{VX[i]}, {i * 16384}, v{VX[i]}")
    a(f"v_lshrrev_b32 v14, 3, v{lane}")
    a("v_mul_u32_u24 v14, 6144, v14")
    a(f"v_bfe_u32 v16, v{lane}, 4, 1")
    a("v_lshlrev_b32 v16, 2, v16")
    a("v_xor_b32 v16, v15, v16")
    a("v_lshlrev_b32 v16, 4, v16")
    a("v_add_u32 v14, v14, v16")
    a("s_lshl_b32 s28, s23, 7")
    a("v_add_u32 v14, s28, v14")
    for i in range(6):
        a(f"s_mul_i32 s28, s25, 6")
        a(f"s_add_u32 s28, s28, {i}")
        a("s_lshr_b32 s29, s28, 3")
        a("s_and_b32 s30, s28, 7")
        a("s_lshl_b32 s29, s29, 11")
        a(f"s_mul_i32 s30, s30, {8*6144}")
        a("s_add_u32 s29, s29, s30")
        a(f"v_add_u32 v{VW[i]}, s29, v14")
    a("s_lshl_b32 s32, s25, 12")
    a("s_mul_i32 s33, s25, 6144")
    a("s_add_u32 s33, s33, 16384")
    a("s_mov_b32 s34, 0")
    a("s_mov_b32 s35, 0")
    def issue(stage):
        slot = (stage % NSLOT) * STAGE
        for i in range(4):
            a(f"s_add_u32 m0, s32, {slot + i * 1024}")
            a("s_nop 0")
            a(f"buffer_load_dwordx4 v{VX[i]}, s[12:15], s34 offen lds")
        for i in range(6):
            a(f"s_add_u32 m0, s33, {slot + i * 1024}")
            a("s_nop 0")
            a(f"buffer_load_dwordx4 v{VW[i]}, s[16:19], s35 offen lds")
        a("s_add_u32 s34, s34, 128")
        a(f"s_add_u32 s35, s35, {64 * 6144}")
    for st in range(NSLOT): issue(st)
    a(f"s_waitcnt vmcnt({(NSLOT - 1) * 10})")
    a("s_barrier")
    for i in range(NSTEP - 1):
        last_issued = min(i + NSLOT - 1, NSTEP - 1)
        newer = last_issued - (i + 1)
        a(f"s_waitcnt vmcnt({newer * 10})")
        a("s_barrier")
        if i + NSLOT < NSTEP: issue(i + NSLOT)
    a.label(L_done)
    a("s_endpgm")
    return kernel_desc(name, 160, 96)

if __name__ == "__main__":
    a = Asm()
    NSLOT = 4
    a.raw(f"; @launch kernel=qkv_kernel grid=(256,1,1) block=(512,1,1) lds={NSLOT*40960}")
    a.raw('.amdgcn_target "amdgcn-amd-amdhsa--gfx950"')
    a.raw(".text")
    import sys
    d = gen_qkv(a, NSLOT, prof=(len(sys.argv) > 1))
    a.raw('.section .rodata,"a"')
    a.raw(".p2align 6")
    a.raw(d)
    open("qkv_only.s", "w").write(a.text())
```

```python
import sys
from asmlib import *
from gen_qkv import gen_qkv
from gen_attn import gen_attn
from gen_oproj import gen_oproj
from gen_b import gen_bp1, gen_bp2
prof = "prof" in sys.argv
out = [x for x in sys.argv[1:] if x.endswith(".s")]
out = out[0] if out else "all.s"
PF = 1
for x in sys.argv:
    if x.startswith("pf="): PF = int(x[3:])
a = Asm()
NSLOT = 4
hdr = open("concat_heads__mha_block__spectral_fnet__prompt.s.ref").read().split("\n")
for ln in hdr:
    if ln.startswith("; Override") : break
    a.raw(ln)
a.raw(f"; @launch kernel=qkv_kernel grid=(256,1,1) block=(512,1,1) lds={NSLOT*40960}")
a.raw(f"; @launch kernel=attn_kernel grid=(256,1,1) block=(512,1,1) lds={65536+64}")
a.raw(f"; @launch kernel=oproj_kernel grid=(256,1,1) block=(512,1,1) lds=131072")
a.raw(f"; @launch kernel=bp1_kernel grid=(256,1,1) block=(512,1,1) lds=65536")
a.raw(f"; @launch kernel=bp2_kernel grid=(256,1,1) block=(512,1,1) lds=32768")
a.raw('.amdgcn_target "amdgcn-amd-amdhsa--gfx950"')
a.raw(".text")
ds = [gen_qkv(a, NSLOT, prof=prof, prof2=("prof2" in sys.argv), prefetch=PF), gen_attn(a, prof=prof), gen_oproj(a, prof=prof), gen_bp1(a, prof=prof), gen_bp2(a, prof=prof)]
a.raw('.section .rodata,"a"')
for d in ds:
    a.raw(".p2align 6")
    a.raw(d)
open(out, "w").write(a.text())
```
